```python
import torch

def _softmax(x, axis=-1):
    return torch.softmax(x, dim=axis)
def _gelu(x):
    return torch.nn.functional.gelu(x, approximate="tanh")
def _silu(x):
    return torch.nn.functional.silu(x)
def _sigmoid(x):
    return torch.sigmoid(x)
def _layernorm(x, axis=-1, eps=1e-5):
    m = x.mean(dim=axis, keepdim=True)
    v = x.var(dim=axis, keepdim=True, unbiased=False)
    return (x - m) / torch.sqrt(v + eps)
def _scatter_add(tgt, idx, src, axis=0):
    return tgt.clone().index_add_(axis, idx, src)
def _segment_sum(src, seg, n):
    out = torch.zeros((n,) + src.shape[1:], dtype=src.dtype)
    return out.index_add_(0, seg, src)
def _pad(x, pw):
    flat = tuple(v for pair in reversed(pw) for v in pair)
    return torch.nn.functional.pad(x, flat)

kernel_name = 'recurrent_scan__mha_block_cached__glu_gated_swiglu__prompt'

def setup_inputs():

    _w = (lambda a: (lambda t: t.to(torch.bfloat16) if t.is_floating_point() else t)(torch.as_tensor(a)))
    def _A_setup():
        B, Sq, D = 1, 2048, 576
        H, Sk, Dh = 32, 2048, 128
        return {
            "x": _w((lambda *s: torch.randn(*s, dtype=torch.bfloat16) * 0.05)(B, Sq, D)),
            "k_cache": _w((lambda *s: torch.randn(*s, dtype=torch.bfloat16) * 1.6)(B, H, Sk, Dh)),
            "v_cache": _w((lambda *s: torch.randn(*s, dtype=torch.bfloat16) * 1.6)(B, H, Sk, Dh)),
            "wq": _w((lambda *s: torch.randn(*s, dtype=torch.bfloat16) * 1.6)(D, H * Dh) * (D ** -0.5)),
            "wo": _w((lambda *s: torch.randn(*s, dtype=torch.bfloat16) * 1.6)(H * Dh, D) * ((H * Dh) ** -0.5)),
        }
    _A_in = _A_setup()

    def _B_setup():
        B, S, D, F = 1, 2048, 576, 4608
        return {
            "x": _w((lambda *s: torch.randn(*s, dtype=torch.bfloat16) * 0.05)(B, S, D)),
            "w1": _w((lambda *s: torch.randn(*s, dtype=torch.bfloat16) * 0.2)(D, F) * (2.0 / D) ** 0.5),
            "w3": _w((lambda *s: torch.randn(*s, dtype=torch.bfloat16) * 0.2)(D, F) * (2.0 / D) ** 0.5),
            "w2": _w((lambda *s: torch.randn(*s, dtype=torch.bfloat16) * 0.2)(F, D) * (2.0 / F) ** 0.5),
        }
    _B_in = _B_setup()

    return {
        "A_x": _A_in["x"],
        "A_k_cache": _A_in["k_cache"],
        "A_v_cache": _A_in["v_cache"],
        "A_wq": _A_in["wq"],
        "A_wo": _A_in["wo"],
        "B_x": _B_in["x"],
        "B_w1": _B_in["w1"],
        "B_w3": _B_in["w3"],
        "B_w2": _B_in["w2"],
    }

def reference(A_x, A_k_cache, A_v_cache, A_wq, A_wo, B_x, B_w1, B_w3, B_w2):
    def _A_ref(x, k_cache, v_cache, wq, wo):
        B, Sq, D = x.shape
        H, Dh = 32, 128
        q = (lambda x, *d: x.permute(*d))((x @ wq).reshape(B, Sq, H, Dh), 0, 2, 1, 3)
        scores = torch.einsum("bhqd,bhkd->bhqk", q, k_cache) * (Dh ** -0.5)
        p = _softmax(scores, axis=-1)
        o = torch.einsum("bhqk,bhkd->bhqd", p, v_cache)
        return (lambda x, *d: x.permute(*d))(o, 0, 2, 1, 3).reshape(B, Sq, H * Dh) @ wo

    def _B_ref(x, w1, w3, w2):
        gate = torch.einsum("bsd,df->bsf", x, w1)
        up = torch.einsum("bsd,df->bsf", x, w3)
        h = _silu(gate) * up
        out = torch.einsum("bsf,fd->bsd", h, w2)
        return out

    x = A_x
    xn = _layernorm(x, axis=-1)
    s = _A_ref(xn, A_k_cache, A_v_cache, A_wq, A_wo)
    g = _silu(_B_ref(xn, B_w1, B_w3, B_w2))
    return x + s * g
```

```python
import re

REG_RE = re.compile(r"^(-|\|)?(?:abs\()?([vas])(?:(\d+)|\[(\d+):(\d+)\])\)?\|?$")

def parse_reg(tok):
    tok = tok.strip()
    if tok in ("vcc", "exec"): return [(tok, 0)]
    if tok in ("vcc_lo", "vcc_hi"): return [("vcc", 0)]
    if tok in ("exec_lo", "exec_hi"): return [("exec", 0)]
    if tok == "m0": return [("m0", 0)]
    m = REG_RE.match(tok)
    if not m: return []
    f = m.group(2)
    if m.group(3) is not None: return [(f, int(m.group(3)))]
    return [(f, i) for i in range(int(m.group(4)), int(m.group(5)) + 1)]

TRANS = ("v_exp_f32", "v_log_f32", "v_rcp_f32", "v_rsq_f32", "v_sqrt_f32", "v_sin_f32", "v_cos_f32")

class I:
    __slots__ = ("text", "op", "rd", "wr", "kind", "tag", "srcc", "pre", "post_wait", "pre_wait", "need", "passes", "data")
    def __init__(s, text, tag=None, need=None):
        s.text = text.strip(); s.tag = tag; s.need = need
        s.pre = 0
        s.post_wait = {}
        s.pre_wait = {}
        s.srcc = []; s.passes = 0; s.data = []
        t = s.text.split(";")[0].strip()
        if t.endswith(":") or t.startswith("."):
            s.op = "label"; s.kind = "label"; s.rd = []; s.wr = []; return
        parts = t.split(None, 1)
        op = parts[0]; s.op = op
        ops = []
        mods = ""
        if len(parts) > 1:
            raw = [x.strip() for x in parts[1].split(",")]
            for x in raw:
                sp = x.split()
                ops.append(sp[0] if sp else "")
                if len(sp) > 1: mods += " " + " ".join(sp[1:])
        R = [parse_reg(x) for x in ops]
        flat = lambda L: [r for l in L for r in l]
        rd = []; wr = []
        if op.startswith("v_mfma"):
            s.kind = "mfma"; wr = R[0]; rd = flat(R[1:]); s.srcc = R[3]
            s.passes = 4 if "16x16x32" in op else 8
        elif op.startswith("v_cmp"):
            s.kind = "valu"; wr = R[0]; rd = flat(R[1:])
            if op.startswith("v_cmpx"): wr = wr + [("exec", 0)]
        elif op.startswith("v_permlane") and "swap" in op:
            s.kind = "valu"; wr = flat(R); rd = flat(R)
        elif op in ("v_readfirstlane_b32", "v_readlane_b32"):
            s.kind = "valu"; wr = R[0]; rd = flat(R[1:])
        elif op.startswith("v_"):
            s.kind = "trans" if op.replace("_e32", "").replace("_e64", "") in TRANS else "valu"
            wr = R[0]; rd = flat(R[1:])
            if op.startswith(("v_fmac", "v_dot2c")): rd = rd + R[0]
            if op.startswith(("v_add_co", "v_sub_co", "v_addc_co", "v_subb_co")):
                wr = R[0] + R[1]; rd = flat(R[2:])
            if op.startswith("v_cndmask") and len(ops) == 3: rd = rd + [("vcc", 0)]
            if "dpp" in op or "row_" in mods or "quad_perm" in mods:
                s.kind = "dpp"; rd = rd + R[0]
        elif op.startswith("ds_read") or op.startswith("ds_bpermute") or op.startswith("ds_swizzle"):
            s.kind = "ds_read"; wr = R[0]; rd = flat(R[1:])
        elif op.startswith("ds_write"):
            s.kind = "ds_write"; rd = flat(R)
        elif op.startswith(("buffer_load", "global_load")):
            if " lds" in (" " + mods + " ") or "_lds_" in op:
                s.kind = "dma"; rd = flat(R) + [("m0", 0)]
            else:
                s.kind = "vload"; wr = R[0]; rd = flat(R[1:])
        elif op.startswith(("buffer_store", "global_store")):
            s.kind = "vstore"; rd = flat(R)
            s.data = R[0] if op.startswith("buffer") else R[1]
        elif op.startswith(("buffer_atomic", "global_atomic")):
            s.kind = "vstore"; rd = flat(R)
            if "sc0" in mods: s.kind = "vload"; wr = R[0]
        elif op.startswith(("buffer_wbl2", "buffer_inv")):
            s.kind = "vstore"
        elif op.startswith(("s_load", "s_buffer_load", "s_memtime", "s_memrealtime")):
            s.kind = "smem"; wr = R[0]; rd = flat(R[1:])
        elif op == "s_waitcnt": s.kind = "wait"
        elif op == "s_nop": s.kind = "nop"
        elif op == "s_barrier": s.kind = "barrier"
        elif op.startswith(("s_cbranch", "s_branch", "s_endpgm", "s_setpc", "s_setprio", "s_sleep")):
            s.kind = "salu"; rd = flat(R)
            if "vcc" in op: rd = rd + [("vcc", 0)]
            if "scc" in op: rd = rd + [("scc", 0)]
        elif op.startswith(("s_cmp", "s_bitcmp")):
            s.kind = "salu"; rd = flat(R); wr = [("scc", 0)]
        elif op.startswith("s_"):
            s.kind = "salu"; wr = R[0]; rd = flat(R[1:])
            if "saveexec" in op: wr = wr + [("exec", 0)]
            if op.startswith(("s_addk", "s_mulk")): rd = rd + R[0]
        elif op == "WAITVM":
            s.kind = "pseudo"
        else:
            raise ValueError("unknown op " + text)
        s.rd = rd; s.wr = wr
    def states(s):
        if s.kind in ("label", "pseudo"): return 0
        if s.kind == "nop": return int(s.text.split()[1], 0) + 1
        return 1

def waitvm(tag): return I("WAITVM", need=tag)

VALU = ("valu", "trans", "dpp")
VM = ("vload", "vstore", "dma")
LG = ("ds_read", "ds_write")

def wait_text(d):
    t = "s_waitcnt"
    if "vm" in d: t += f" vmcnt({d['vm']})"
    if "lg" in d: t += f" lgkmcnt({d['lg']})"
    return t

def parse_wait(text):
    d = {}
    m = re.search(r"vmcnt\((\d+)\)", text)
    if m: d["vm"] = int(m.group(1))
    m = re.search(r"lgkmcnt\((\d+)\)", text)
    if m: d["lg"] = int(m.group(1))
    return d

def insert_waits(trace, hoist=True, verbose=False):
    for _round in range(400):
        changed = False
        q = {"vm": [], "lg": []}
        smem = []
        def apply(d):
            for c, n in d.items():
                if len(q[c]) > n: q[c] = q[c][len(q[c]) - n:] if n else []
                if c == "lg" and n == 0: smem.clear()
        issued = {"vm": [], "lg": []}
        for i, ins in enumerate(trace):
            if ins.pre_wait: apply(ins.pre_wait)
            if ins.kind == "wait": apply(parse_wait(ins.text))
            touched = set(ins.rd) | set(ins.wr)
            need = {}
            if ins.kind == "pseudo":
                k = [j for j in q["vm"] if trace[j].tag == ins.need]
                if k: need["vm"] = k[-1]
            else:
                for c in ("vm", "lg"):
                    k = [j for j in q[c] if trace[j].wr and touched & set(trace[j].wr)]
                    if k: need[c] = k[-1]
                if any(touched & set(trace[j].wr) for j in smem):
                    ins.pre_wait["lg"] = 0; changed = True; break
            if need:
                for c, j in need.items():
                    mx = 63 if c == "vm" else 15
                    anchor = None
                    if hoist:
                        p = i - 1
                        while p > j and trace[p].kind not in ("label", "barrier") and not trace[p].op.startswith(("s_cbranch", "s_branch")):
                            if trace[p].kind == "mfma":
                                nxt = trace[p + 1]
                                if trace[p].post_wait or nxt.kind not in ("salu", "wait", "nop", "barrier") or p + 1 == i:
                                    anchor = p
                                    break
                            p -= 1
                            if i - p > 12: break
                    if c == "lg" and smem:
                        ins.pre_wait["lg"] = 0
                    elif anchor is not None:
                        n = sum(1 for x in q[c] if j < x <= anchor)
                        n = min(n, mx)
                        a = trace[anchor]
                        a.post_wait[c] = min(a.post_wait.get(c, 99), n)
                    else:
                        n = min(sum(1 for x in q[c] if x > j), mx)
                        ins.pre_wait[c] = min(ins.pre_wait.get(c, 99), n)
                changed = True
                break
            if ins.kind in VM: q["vm"].append(i)
            if ins.kind in LG: q["lg"].append(i)
            if ins.kind == "smem": smem.append(i)
            if ins.post_wait: apply(ins.post_wait)
            if len(q["vm"]) > 63 and verbose: print("note: >63 vm outstanding at", ins.text)
        if not changed: return
    raise RuntimeError("insert_waits did not converge")

def insert_waits_fast(trace, hoist=True):
    for _round in range(20):
        changed = False
        q = {"vm": [], "lg": []}; smem = []
        def apply(d):
            for c, n in d.items():
                if len(q[c]) > n: q[c] = q[c][len(q[c]) - n:] if n else []
                if c == "lg" and n == 0: smem.clear()
        for i, ins in enumerate(trace):
            if ins.pre_wait: apply(ins.pre_wait)
            if ins.kind == "wait": apply(parse_wait(ins.text))
            need = {}
            if ins.kind == "pseudo":
                k = [j for j in q["vm"] if trace[j].tag == ins.need]
                if k: need["vm"] = k[-1]
            elif ins.kind != "label":
                touched = set(ins.rd) | set(ins.wr)
                for c in ("vm", "lg"):
                    k = [j for j in q[c] if trace[j].wr and not touched.isdisjoint(trace[j].wr)]
                    if k: need[c] = k[-1]
                if any(not touched.isdisjoint(trace[j].wr) for j in smem):
                    ins.pre_wait["lg"] = 0; changed = True; apply({"lg": 0}); need.pop("lg", None)
            for c, j in need.items():
                mx = 63 if c == "vm" else 15
                anchor = None
                if hoist:
                    p = i - 1
                    while p > j and trace[p].kind not in ("label", "barrier") and not trace[p].op.startswith(("s_cbranch", "s_branch", "s_call", "s_setpc")):
                        if trace[p].kind == "mfma":
                            nx = p + 1
                            while trace[nx].kind == "pseudo" and nx < i: nx += 1
                            nxt = trace[nx]
                            if trace[p].post_wait or nxt.kind not in ("salu", "wait", "nop", "barrier"):
                                anchor = p; break
                        p -= 1
                        if i - p > 14: break
                if c == "lg" and smem:
                    ins.pre_wait["lg"] = 0; apply({"lg": 0})
                elif anchor is not None:
                    n = min(sum(1 for x in q[c] if j < x <= anchor), mx)
                    a = trace[anchor]
                    a.post_wait[c] = min(a.post_wait.get(c, 99), n)
                    q[c] = [x for x in q[c] if x > j]
                else:
                    n = min(sum(1 for x in q[c] if x > j), mx)
                    ins.pre_wait[c] = min(ins.pre_wait.get(c, 99), n)
                    q[c] = [x for x in q[c] if x > j]
                changed = True
            if ins.kind in VM: q["vm"].append(i)
            if ins.kind in LG: q["lg"].append(i)
            if ins.kind == "smem": smem.append(i)
            if ins.post_wait: apply(ins.post_wait)
        if not changed: return
    raise RuntimeError("insert_waits_fast did not converge")

def hazards(trace):
    added = 0
    for _round in range(10):
        changed = False
        hist = []
        pos = 0
        for ins in trace:
            if ins.kind in ("label", "pseudo"):
                if ins.pre_wait: pos += 1
                continue
            if ins.pre_wait: pos += 1
            pos += ins.pre
            rd = set(ins.rd); wr = set(ins.wr)
            req = 0
            for (p, ppos) in reversed(hist):
                dist = pos - ppos
                if dist >= 20: break
                n = 0
                pw = set(p.wr)
                if p.kind in VALU:
                    vw = {r for r in pw if r[0] in "va"}
                    sw = {r for r in pw if r[0] in ("s", "vcc")}
                    if ins.kind == "mfma" and vw & rd: n = max(n, 2)
                    if p.kind == "trans" and ins.kind in ("valu", "dpp", "mfma") and vw & rd: n = max(n, 1)
                    if p.kind == "trans" and ins.kind not in VALU and vw & rd: n = max(n, 1)
                    if ins.kind == "dpp" and vw & rd: n = max(n, 2)
                    if ins.op.startswith("v_permlane") and vw & rd: n = max(n, 2)
                    if ins.op in ("v_readfirstlane_b32", "v_readlane_b32") and vw & rd: n = max(n, 1)
                    if sw & rd:
                        if ins.kind in VM: n = max(n, 5)
                        elif ins.kind in VALU: n = max(n, 4 if ins.op in ("v_readlane_b32", "v_writelane_b32") else 2)
                        elif ins.kind == "salu": n = max(n, 1 if not ins.op.startswith("s_cbranch") else 0)
                    if ("exec", 0) in pw and (ins.kind in ("mfma", "dpp") or ins.op.startswith(("v_permlane", "v_read"))): n = max(n, 5)
                if p.kind == "mfma":
                    big = 8 if p.passes == 4 else 12
                    if ins.kind == "mfma":
                        ab = rd - set(ins.srcc)
                        if pw & set(ins.rd[: len(ins.rd) - len(ins.srcc)]): n = max(n, big)
                        c = set(ins.srcc)
                        if pw & c and not (list(p.wr) == list(ins.srcc) and p.passes == ins.passes): n = max(n, big - 2)
                        if pw & wr and not (list(p.wr) == list(ins.srcc)): n = max(n, big - 2)
                    elif pw & (rd | wr): n = max(n, big)
                    if ins.kind in VALU and set(p.srcc) & wr: n = max(n, 3 if p.passes == 4 else 7)
                if p.kind == "salu" and ("m0", 0) in pw and ins.kind == "dma": n = max(n, 1)
                if p.kind == "vstore" and len(p.data) >= 3 and set(p.data) & wr: n = max(n, 2)
                if p.kind == "ds_write" and len(p.rd) >= 4 and set(p.rd) & wr and ins.kind in VALU: n = max(n, 1)
                if n > dist: req = max(req, n - dist)
            if req:
                ins.pre += req; pos += req; added += req; changed = True
            pos += ins.states()
            hist.append((ins, pos))
            if ins.post_wait: pos += 1
            if len(hist) > 40: hist.pop(0)
        if not changed: return added
    raise RuntimeError("hazards did not converge")

def emit(code):
    out = []
    for ins in code:
        if ins.pre_wait: out.append(wait_text(ins.pre_wait))
        n = ins.pre
        while n > 0:
            k = min(n, 16); out.append(f"s_nop {k-1}"); n -= k
        if ins.kind != "pseudo": out.append(ins.text)
        if ins.post_wait: out.append(wait_text(ins.post_wait))
    return "\n".join(out) + "\n"

def v(n, k=1): return f"v{n}" if k == 1 else f"v[{n}:{n+k-1}]"
def a(n, k=1): return f"a{n}" if k == 1 else f"a[{n}:{n+k-1}]"
def s(n, k=1): return f"s{n}" if k == 1 else f"s[{n}:{n+k-1}]"

def mfma(d, A, B, C): return I(f"v_mfma_f32_16x16x32_bf16 {d}, {A}, {B}, {C}")

def cost(ins):
    if ins.kind == "trans": return 8
    if ins.kind in ("label", "pseudo"): return 0
    return 4

def is_scalar(ins): return ins.kind in ("salu", "wait", "nop", "barrier", "pseudo")

def interleave(mfmas, lanes):
    gaps = [[] for _ in mfmas]
    for g, ins in lanes:
        assert 0 <= g < len(mfmas), (g, ins.text)
        gaps[g].append(ins)
    out = []
    for m, g in zip(mfmas, gaps):
        out.append(m)
        out += [x for x in g if is_scalar(x)] + [x for x in g if not is_scalar(x)]
    return out

def est_cycles(code):
    tot = 0; cur = None; first = False
    seq = []
    for ins in code:
        if ins.pre_wait: seq.append("s")
        if ins.pre: seq.append(("n", ins.pre))
        if ins.kind not in ("label", "pseudo"): seq.append(ins)
        if ins.post_wait: seq.append("s")
    for x in seq:
        if isinstance(x, I) and x.kind == "mfma":
            if cur is not None: tot += max(16, cur)
            cur = 8; first = True
        else:
            if x == "s": c = 4; sc = True
            elif isinstance(x, tuple): c = 4 * x[1]; sc = False
            else: c = cost(x) * (x.states() if x.kind == "nop" else 1); sc = is_scalar(x)
            if first and sc: c = 0
            first = False
            if cur is None: tot += c
            else: cur += c
    if cur is not None: tot += max(16, cur)
    return tot

NO_SCC = ("s_mov_b32", "s_mov_b64", "s_movk_i32", "s_mul_i32", "s_mul_hi_u32", "s_cselect_b32", "s_cselect_b64", "s_call_b64", "s_getpc_b64", "s_setpc_b64", "s_mulk_i32")
def check_scc(trace):
    last = None
    for ins in trace:
        if ins.kind != "salu": continue
        reads = ins.op.startswith(("s_cselect", "s_cbranch_scc", "s_addc", "s_subb"))
        if reads:
            ok = last is not None and (last.op.startswith(("s_cmp", "s_bitcmp")) or (ins.op.startswith(("s_addc", "s_subb")) and last.op.startswith(("s_add_u32", "s_sub_u32"))))
            assert ok, f"SCC reader {ins.text} last writer {last.text if last else None}"
        if ins.op.startswith(("s_cbranch", "s_branch", "s_endpgm", "s_setprio", "s_sleep")) or ins.op in NO_SCC: continue
        last = ins
```

```python
from asmlib import *
KN = "recurrent_scan__mha_block_cached__glu_gated_swiglu__prompt"
KA_X, KA_K, KA_V, KA_WQ, KA_WO, KA_BX, KA_W1, KA_W3, KA_W2, KA_OUT, KA_DBG, KA_WS = [8 * i for i in range(12)]
WS_XN = 0
WS_OH = 4 << 20
WS_PART = 48 << 20
WS_SIZE = 268435456
LOG2E = 1.4426950408889634

import struct
def f2u(x): return struct.unpack("<I", struct.pack("<f", x))[0]
def fhex(x): return "0x%08x" % f2u(x)

def srd(d, b, nbytes):
    return [I(f"s_mov_b32 s{d}, s{b}"), I(f"s_mov_b32 s{d+1}, s{b+1}"),
            I(f"s_mov_b32 s{d+2}, {nbytes}"), I(f"s_mov_b32 s{d+3}, 0x20000")]

def L(txt):
    return [I(x) for x in txt.strip().split("\n") if x.strip() and not x.strip().startswith(";")]

def kernel_text(name, code_text):
    return f""".globl {name}
.p2align 8
.type {name},@function
{name}:
{code_text}"""

def descriptor(name, nvgpr, accoff, nsgpr=102):
    return f""".p2align 6
.amdhsa_kernel {name}
  .amdhsa_next_free_vgpr {nvgpr}
  .amdhsa_next_free_sgpr {nsgpr}
  .amdhsa_accum_offset {accoff}
  .amdhsa_group_segment_fixed_size 0
  .amdhsa_kernarg_size 96
  .amdhsa_user_sgpr_count 2
  .amdhsa_user_sgpr_kernarg_segment_ptr 1
  .amdhsa_system_sgpr_workgroup_id_x 1
.end_amdhsa_kernel
"""

def finalize(code, trace=None):
    trace = trace if trace is not None else code
    insert_waits_fast(trace)
    n = hazards(trace)
    check_scc(trace)
    return emit(code), n
```

```python
import sys, importlib
from common import *
def assemble(mods, out):
    ks = [importlib.import_module(m).build() for m in mods]
    hdr = open("cdna_kernels/" + KN + ".s.ref").read().split("; Override launch")[0]
    t = hdr
    for k in ks:
        t += f"; @launch kernel={k['name']} grid=({k['grid']},1,1) block=({k['block']},1,1) lds={k['lds']}\n"
    t += '.amdgcn_target "amdgcn-amd-amdhsa--gfx950"\n.text\n'
    for k in ks: t += kernel_text(k["name"], k["text"])
    t += '.section .rodata,"a"\n'
    for k in ks: t += descriptor(k["name"], k["nvgpr"], k["accoff"], k["nsgpr"])
    open(out, "w").write(t)
    print(out, len(t), "bytes", t.count("\n"), "lines")
if __name__ == "__main__":
    out = sys.argv[1]
    assemble(sys.argv[2:], out)
```

```python
import re

REG_RE = re.compile(r"^(-|\|)?(?:abs\()?([vas])(?:(\d+)|\[(\d+):(\d+)\])\)?\|?$")

def parse_reg(tok):
    tok = tok.strip()
    if tok in ("vcc", "exec"): return [(tok, 0)]
    if tok in ("vcc_lo", "vcc_hi"): return [("vcc", 0)]
    if tok in ("exec_lo", "exec_hi"): return [("exec", 0)]
    if tok == "m0": return [("m0", 0)]
    m = REG_RE.match(tok)
    if not m: return []
    f = m.group(2)
    if m.group(3) is not None: return [(f, int(m.group(3)))]
    return [(f, i) for i in range(int(m.group(4)), int(m.group(5)) + 1)]

TRANS = ("v_exp_f32", "v_log_f32", "v_rcp_f32", "v_rsq_f32", "v_sqrt_f32", "v_sin_f32", "v_cos_f32")

class I:
    __slots__ = ("text", "op", "rd", "wr", "kind", "tag", "srcc", "pre", "post_wait", "pre_wait", "need", "passes", "data")
    def __init__(s, text, tag=None, need=None):
        s.text = text.strip(); s.tag = tag; s.need = need
        s.pre = 0
        s.post_wait = {}
        s.pre_wait = {}
        s.srcc = []; s.passes = 0; s.data = []
        t = s.text.split(";")[0].strip()
        if t.endswith(":") or t.startswith("."):
            s.op = "label"; s.kind = "label"; s.rd = []; s.wr = []; return
        parts = t.split(None, 1)
        op = parts[0]; s.op = op
        ops = []
        mods = ""
        if len(parts) > 1:
            raw = [x.strip() for x in parts[1].split(",")]
            for x in raw:
                sp = x.split()
                ops.append(sp[0] if sp else "")
                if len(sp) > 1: mods += " " + " ".join(sp[1:])
        R = [parse_reg(x) for x in ops]
        flat = lambda L: [r for l in L for r in l]
        rd = []; wr = []
        if op.startswith("v_mfma"):
            s.kind = "mfma"; wr = R[0]; rd = flat(R[1:]); s.srcc = R[3]
            s.passes = 4 if "16x16x32" in op else 8
        elif op.startswith("v_cmp"):
            s.kind = "valu"; wr = R[0]; rd = flat(R[1:])
            if op.startswith("v_cmpx"): wr = wr + [("exec", 0)]
        elif op.startswith("v_permlane") and "swap" in op:
            s.kind = "valu"; wr = flat(R); rd = flat(R)
        elif op in ("v_readfirstlane_b32", "v_readlane_b32"):
            s.kind = "valu"; wr = R[0]; rd = flat(R[1:])
        elif op.startswith("v_"):
            s.kind = "trans" if op.replace("_e32", "").replace("_e64", "") in TRANS else "valu"
            wr = R[0]; rd = flat(R[1:])
            if op.startswith(("v_fmac", "v_dot2c")): rd = rd + R[0]
            if op.startswith(("v_add_co", "v_sub_co", "v_addc_co", "v_subb_co")):
                wr = R[0] + R[1]; rd = flat(R[2:])
            if op.startswith("v_cndmask") and len(ops) == 3: rd = rd + [("vcc", 0)]
            if "dpp" in op or "row_" in mods or "quad_perm" in mods:
                s.kind = "dpp"; rd = rd + R[0]
        elif op.startswith("ds_read") or op.startswith("ds_bpermute") or op.startswith("ds_swizzle"):
            s.kind = "ds_read"; wr = R[0]; rd = flat(R[1:])
        elif op.startswith("ds_write"):
            s.kind = "ds_write"; rd = flat(R)
        elif op.startswith(("buffer_load", "global_load")):
            if " lds" in (" " + mods + " ") or "_lds_" in op:
                s.kind = "dma"; rd = flat(R) + [("m0", 0)]
            else:
                s.kind = "vload"; wr = R[0]; rd = flat(R[1:])
        elif op.startswith(("buffer_store", "global_store")):
            s.kind = "vstore"; rd = flat(R)
            s.data = R[0] if op.startswith("buffer") else R[1]
        elif op.startswith(("buffer_atomic", "global_atomic")):
            s.kind = "vstore"; rd = flat(R)
            if "sc0" in mods: s.kind = "vload"; wr = R[0]
        elif op.startswith(("buffer_wbl2", "buffer_inv")):
            s.kind = "vstore"
        elif op.startswith(("s_load", "s_buffer_load", "s_memtime", "s_memrealtime")):
            s.kind = "smem"; wr = R[0]; rd = flat(R[1:])
        elif op == "s_waitcnt": s.kind = "wait"
        elif op == "s_nop": s.kind = "nop"
        elif op == "s_barrier": s.kind = "barrier"
        elif op.startswith(("s_cbranch", "s_branch", "s_endpgm", "s_setpc", "s_setprio", "s_sleep")):
            s.kind = "salu"; rd = flat(R)
            if "vcc" in op: rd = rd + [("vcc", 0)]
            if "scc" in op: rd = rd + [("scc", 0)]
        elif op.startswith(("s_cmp", "s_bitcmp")):
            s.kind = "salu"; rd = flat(R); wr = [("scc", 0)]
        elif op.startswith("s_"):
            s.kind = "salu"; wr = R[0] if R else []; rd = flat(R[1:])
            if "saveexec" in op: wr = wr + [("exec", 0)]
            if op.startswith(("s_addk", "s_mulk")): rd = rd + R[0]
        elif op == "WAITVM":
            s.kind = "pseudo"
        else:
            raise ValueError("unknown op " + text)
        s.rd = rd; s.wr = wr
    def states(s):
        if s.kind in ("label", "pseudo"): return 0
        if s.kind == "nop": return int(s.text.split()[1], 0) + 1
        return 1

def waitvm(tag): return I("WAITVM", need=tag)

VALU = ("valu", "trans", "dpp")
VM = ("vload", "vstore", "dma")
LG = ("ds_read", "ds_write")

def wait_text(d):
    t = "s_waitcnt"
    if "vm" in d: t += f" vmcnt({d['vm']})"
    if "lg" in d: t += f" lgkmcnt({d['lg']})"
    return t

def parse_wait(text):
    d = {}
    m = re.search(r"vmcnt\((\d+)\)", text)
    if m: d["vm"] = int(m.group(1))
    m = re.search(r"lgkmcnt\((\d+)\)", text)
    if m: d["lg"] = int(m.group(1))
    return d

def insert_waits(trace, hoist=True, verbose=False):
    for _round in range(400):
        changed = False
        q = {"vm": [], "lg": []}
        smem = []
        def apply(d):
            for c, n in d.items():
                if len(q[c]) > n: q[c] = q[c][len(q[c]) - n:] if n else []
                if c == "lg" and n == 0: smem.clear()
        issued = {"vm": [], "lg": []}
        for i, ins in enumerate(trace):
            if ins.pre_wait: apply(ins.pre_wait)
            if ins.kind == "wait": apply(parse_wait(ins.text))
            touched = set(ins.rd) | set(ins.wr)
            need = {}
            if ins.kind == "pseudo":
                k = [j for j in q["vm"] if trace[j].tag == ins.need]
                if k: need["vm"] = k[-1]
            else:
                for c in ("vm", "lg"):
                    k = [j for j in q[c] if trace[j].wr and touched & set(trace[j].wr)]
                    if k: need[c] = k[-1]
                if any(touched & set(trace[j].wr) for j in smem):
                    ins.pre_wait["lg"] = 0; changed = True; break
            if need:
                for c, j in need.items():
                    mx = 63 if c == "vm" else 15
                    anchor = None
                    if hoist:
                        p = i - 1
                        while p > j and trace[p].kind not in ("label", "barrier") and not trace[p].op.startswith(("s_cbranch", "s_branch")):
                            if trace[p].kind == "mfma":
                                nxt = trace[p + 1]
                                if trace[p].post_wait or nxt.kind not in ("salu", "wait", "nop", "barrier") or p + 1 == i:
                                    anchor = p
                                    break
                            p -= 1
                            if i - p > 12: break
                    if c == "lg" and smem:
                        ins.pre_wait["lg"] = 0
                    elif anchor is not None:
                        n = sum(1 for x in q[c] if j < x <= anchor)
                        n = min(n, mx)
                        a = trace[anchor]
                        a.post_wait[c] = min(a.post_wait.get(c, 99), n)
                    else:
                        n = min(sum(1 for x in q[c] if x > j), mx)
                        ins.pre_wait[c] = min(ins.pre_wait.get(c, 99), n)
                changed = True
                break
            if ins.kind in VM: q["vm"].append(i)
            if ins.kind in LG: q["lg"].append(i)
            if ins.kind == "smem": smem.append(i)
            if ins.post_wait: apply(ins.post_wait)
            if len(q["vm"]) > 63 and verbose: print("note: >63 vm outstanding at", ins.text)
        if not changed: return
    raise RuntimeError("insert_waits did not converge")

def insert_waits_fast(trace, hoist=True):
    for _round in range(20):
        changed = False
        q = {"vm": [], "lg": []}; smem = []
        def apply(d):
            for c, n in d.items():
                if len(q[c]) > n: q[c] = q[c][len(q[c]) - n:] if n else []
                if c == "lg" and n == 0: smem.clear()
        for i, ins in enumerate(trace):
            if ins.pre_wait: apply(ins.pre_wait)
            if ins.kind == "wait": apply(parse_wait(ins.text))
            need = {}
            if ins.kind == "pseudo":
                k = [j for j in q["vm"] if trace[j].tag == ins.need]
                if k: need["vm"] = k[-1]
            elif ins.kind != "label":
                touched = set(ins.rd) | set(ins.wr)
                for c in ("vm", "lg"):
                    k = [j for j in q[c] if trace[j].wr and not touched.isdisjoint(trace[j].wr)]
                    if k: need[c] = k[-1]
                if any(not touched.isdisjoint(trace[j].wr) for j in smem):
                    ins.pre_wait["lg"] = 0; changed = True; apply({"lg": 0}); need.pop("lg", None)
            for c, j in need.items():
                mx = 63 if c == "vm" else 15
                anchor = None
                if hoist:
                    p = i - 1
                    while p > j and (trace[p].tag == "thru" or (trace[p].kind not in ("label", "barrier") and not trace[p].op.startswith(("s_cbranch", "s_branch", "s_call", "s_setpc")))):
                        if trace[p].kind == "mfma":
                            nx = p + 1
                            while trace[nx].kind == "pseudo" and nx < i: nx += 1
                            nxt = trace[nx]
                            if trace[p].post_wait or nxt.kind not in ("salu", "wait", "nop", "barrier"):
                                anchor = p; break
                        p -= 1
                        if i - p > 14: break
                if c == "lg" and smem:
                    ins.pre_wait["lg"] = 0; apply({"lg": 0})
                elif anchor is not None:
                    n = min(sum(1 for x in q[c] if j < x <= anchor), mx)
                    a = trace[anchor]
                    a.post_wait[c] = min(a.post_wait.get(c, 99), n)
                    q[c] = [x for x in q[c] if x > j]
                else:
                    n = min(sum(1 for x in q[c] if x > j), mx)
                    ins.pre_wait[c] = min(ins.pre_wait.get(c, 99), n)
                    q[c] = [x for x in q[c] if x > j]
                changed = True
            if ins.kind in VM: q["vm"].append(i)
            if ins.kind in LG: q["lg"].append(i)
            if ins.kind == "smem": smem.append(i)
            if ins.post_wait: apply(ins.post_wait)
        if not changed: return
    raise RuntimeError("insert_waits_fast did not converge")

def hazards(trace):
    added = 0
    for _round in range(10):
        changed = False
        hist = []
        pos = 0
        for ins in trace:
            if ins.kind in ("label", "pseudo"):
                if ins.pre_wait: pos += 1
                continue
            if ins.pre_wait: pos += 1
            pos += ins.pre
            rd = set(ins.rd); wr = set(ins.wr)
            req = 0
            for (p, ppos) in reversed(hist):
                dist = pos - ppos
                if dist >= 20: break
                n = 0
                pw = set(p.wr)
                if p.kind in VALU:
                    vw = {r for r in pw if r[0] in "va"}
                    sw = {r for r in pw if r[0] in ("s", "vcc")}
                    if ins.kind == "mfma" and vw & rd: n = max(n, 2)
                    if p.kind == "trans" and ins.kind in ("valu", "dpp", "mfma") and vw & rd: n = max(n, 1)
                    if p.kind == "trans" and ins.kind not in VALU and vw & rd: n = max(n, 1)
                    if ins.kind == "dpp" and vw & rd: n = max(n, 2)
                    if ins.op.startswith("v_permlane") and vw & rd: n = max(n, 2)
                    if ins.op in ("v_readfirstlane_b32", "v_readlane_b32") and vw & rd: n = max(n, 1)
                    if sw & rd:
                        if ins.kind in VM: n = max(n, 5)
                        elif ins.kind in VALU: n = max(n, 4 if ins.op in ("v_readlane_b32", "v_writelane_b32") else 2)
                        elif ins.kind == "salu": n = max(n, 1 if not ins.op.startswith("s_cbranch") else 0)
                    if ("exec", 0) in pw and (ins.kind in ("mfma", "dpp") or ins.op.startswith(("v_permlane", "v_read"))): n = max(n, 5)
                if p.kind == "mfma":
                    big = 8 if p.passes == 4 else 12
                    if ins.kind == "mfma":
                        ab = rd - set(ins.srcc)
                        if pw & set(ins.rd[: len(ins.rd) - len(ins.srcc)]): n = max(n, big)
                        c = set(ins.srcc)
                        if pw & c and not (list(p.wr) == list(ins.srcc) and p.passes == ins.passes): n = max(n, big - 2)
                        if pw & wr and not (list(p.wr) == list(ins.srcc)): n = max(n, big - 2)
                    elif pw & (rd | wr): n = max(n, big)
                    if ins.kind in VALU and set(p.srcc) & wr: n = max(n, 3 if p.passes == 4 else 7)
                if p.kind == "salu" and ("m0", 0) in pw and ins.kind == "dma": n = max(n, 1)
                if p.kind == "vstore" and len(p.data) >= 3 and set(p.data) & wr: n = max(n, 2)
                if p.kind == "ds_write" and len(p.rd) >= 4 and set(p.rd) & wr and ins.kind in VALU: n = max(n, 1)
                if n > dist: req = max(req, n - dist)
            if req:
                ins.pre += req; pos += req; added += req; changed = True
            pos += ins.states()
            hist.append((ins, pos))
            if ins.post_wait: pos += 1
            if len(hist) > 40: hist.pop(0)
        if not changed: return added
    raise RuntimeError("hazards did not converge")

def emit(code):
    out = []
    for ins in code:
        if ins.pre_wait: out.append(wait_text(ins.pre_wait))
        n = ins.pre
        while n > 0:
            k = min(n, 16); out.append(f"s_nop {k-1}"); n -= k
        if ins.kind != "pseudo": out.append(ins.text)
        if ins.post_wait: out.append(wait_text(ins.post_wait))
    return "\n".join(out) + "\n"

def v(n, k=1): return f"v{n}" if k == 1 else f"v[{n}:{n+k-1}]"
def a(n, k=1): return f"a{n}" if k == 1 else f"a[{n}:{n+k-1}]"
def s(n, k=1): return f"s{n}" if k == 1 else f"s[{n}:{n+k-1}]"

def mfma(d, A, B, C): return I(f"v_mfma_f32_16x16x32_bf16 {d}, {A}, {B}, {C}")

def cost(ins):
    if ins.kind == "trans": return 8
    if ins.kind in ("label", "pseudo"): return 0
    if ins.kind in ("dma", "vload", "vstore"): return 16
    return 4

def is_scalar(ins): return ins.kind in ("salu", "wait", "nop", "barrier", "pseudo", "label", "smem")

def interleave(mfmas, lanes):
    gaps = [[] for _ in mfmas]
    for g, ins in lanes:
        assert 0 <= g < len(mfmas), (g, ins.text)
        gaps[g].append(ins)
    out = []
    for m, g in zip(mfmas, gaps):
        out.append(m)
        mem = lambda x: x.kind in ('ds_read', 'ds_write', 'dma', 'vload')
        out += [x for x in g if is_scalar(x)] + [x for x in g if mem(x)] + [x for x in g if not is_scalar(x) and not mem(x)]
    return out

def est_cycles(code):
    tot = 0; cur = None; first = False
    seq = []
    for ins in code:
        if ins.pre_wait: seq.append("s")
        if ins.pre: seq.append(("n", ins.pre))
        if ins.kind not in ("label", "pseudo"): seq.append(ins)
        if ins.post_wait: seq.append("s")
    for x in seq:
        if isinstance(x, I) and x.kind == "mfma":
            if cur is not None: tot += max(16, cur)
            cur = 8; first = True
        else:
            if x == "s": c = 4; sc = True
            elif isinstance(x, tuple): c = 4 * x[1]; sc = False
            else: c = cost(x) * (x.states() if x.kind == "nop" else 1); sc = is_scalar(x)
            if first and sc: c = 0
            first = False
            if cur is None: tot += c
            else: cur += c
    if cur is not None: tot += max(16, cur)
    return tot

NO_SCC = ("s_mov_b32", "s_mov_b64", "s_movk_i32", "s_mul_i32", "s_mul_hi_u32", "s_cselect_b32", "s_cselect_b64", "s_call_b64", "s_getpc_b64", "s_setpc_b64", "s_mulk_i32")
def check_scc(trace):
    last = None
    for ins in trace:
        if ins.kind != "salu": continue
        reads = ins.op.startswith(("s_cselect", "s_cbranch_scc", "s_addc", "s_subb"))
        if reads:
            ok = last is not None and (last.op.startswith(("s_cmp", "s_bitcmp")) or (ins.op.startswith(("s_addc", "s_subb")) and last.op.startswith(("s_add_u32", "s_sub_u32"))))
            assert ok, f"SCC reader {ins.text} last writer {last.text if last else None}"
        if ins.op.startswith(("s_cbranch", "s_branch", "s_endpgm", "s_setprio", "s_sleep", "buffer_")) or ins.op in NO_SCC: continue
        last = ins
```

```python
from asmlib import *
KN = "recurrent_scan__mha_block_cached__glu_gated_swiglu__prompt"
KA_X, KA_K, KA_V, KA_WQ, KA_WO, KA_BX, KA_W1, KA_W3, KA_W2, KA_OUT, KA_DBG, KA_WS = [8 * i for i in range(12)]
WS_XN = 0
WS_OH = 4 << 20
OHP = 273
PTP = 37
WS_PART = 48 << 20
WS_FLAG = 3 << 20
WS_XCH = 48 << 20
WS_WP = 64 << 20
WS_SIZE = 268435456
LOG2E = 1.4426950408889634

import struct
def f2u(x): return struct.unpack("<I", struct.pack("<f", x))[0]
def fhex(x): return "0x%08x" % f2u(x)

def srd(d, b, nbytes):
    return [I(f"s_mov_b32 s{d}, s{b}"), I(f"s_mov_b32 s{d+1}, s{b+1}"),
            I(f"s_mov_b32 s{d+2}, {nbytes}"), I(f"s_mov_b32 s{d+3}, 0x20000")]

def L(txt):
    return [I(x) for x in txt.strip().split("\n") if x.strip() and not x.strip().startswith(";")]

def kernel_text(name, code_text):
    return f""".globl {name}
.p2align 8
.type {name},@function
{name}:
{code_text}"""

def descriptor(name, nvgpr, accoff, nsgpr=102):
    return f""".p2align 6
.amdhsa_kernel {name}
  .amdhsa_next_free_vgpr {nvgpr}
  .amdhsa_next_free_sgpr {nsgpr}
  .amdhsa_accum_offset {accoff}
  .amdhsa_group_segment_fixed_size 0
  .amdhsa_kernarg_size 96
  .amdhsa_user_sgpr_count 2
  .amdhsa_user_sgpr_kernarg_segment_ptr 1
  .amdhsa_system_sgpr_workgroup_id_x 1
.end_amdhsa_kernel
"""

def finalize(code, trace=None):
    trace = trace if trace is not None else code
    insert_waits_fast(trace)
    n = hazards(trace)
    check_scc(trace)
    return emit(code), n

import os
STAMPS = bool(int(os.environ.get("STAMPS", "0")))
WS_STAMP = 100 << 20
def stamp(i, base=80):
    if not STAMPS or i is None: return []
    return L(f"""
s_memtime s[96:97]
s_memrealtime s[98:99]
s_waitcnt lgkmcnt(0)
s_mov_b32 s{base+2*i}, s96
s_mov_b32 s{base+2*i+1}, s98
""")
def stamp_out(n, srd_ws, kidx, s_wave, base=80):
    if not STAMPS: return []
    c = [I("s_waitcnt vmcnt(0)")] + stamp(n - 1, base)
    c += L(f"""
s_lshl_b32 s96, s2, 2
s_add_u32 s96, s96, s{s_wave}
s_lshl_b32 s96, s96, 6
s_add_u32 s96, s96, {WS_STAMP + kidx * 262144}
v_mov_b32 v0, 0
""")
    for i in range(2 * n):
        c.append(I(f"v_mov_b32 v1, s{base+i}"))
        c.append(I(f"buffer_store_dword v1, v0, s[{srd_ws}:{srd_ws+3}], s96 offen offset:{4*i}"))
    return c

ABL = os.environ.get("ABL", "").split(",")

STF = os.environ.get("STF", "")
STF = (" " + STF) if STF else ""

STAMPSET = os.environ.get("STAMPSET", "")
KVF = (" " + os.environ["KVF"]) if os.environ.get("KVF") else ""
```

```python
from asmlib import *
KN = "recurrent_scan__mha_block_cached__glu_gated_swiglu__prompt"
KA_X, KA_K, KA_V, KA_WQ, KA_WO, KA_BX, KA_W1, KA_W3, KA_W2, KA_OUT, KA_DBG, KA_WS = [8 * i for i in range(12)]
WS_XN = 0
WS_OH = 4 << 20
OHP = 273
PTP = 37
WS_PART = 48 << 20
WS_FLAG = 3 << 20
WS_XCH = 48 << 20
WS_WP = 64 << 20
WS_SIZE = 268435456
LOG2E = 1.4426950408889634

import struct
def f2u(x): return struct.unpack("<I", struct.pack("<f", x))[0]
def fhex(x): return "0x%08x" % f2u(x)

def srd(d, b, nbytes):
    return [I(f"s_mov_b32 s{d}, s{b}"), I(f"s_mov_b32 s{d+1}, s{b+1}"),
            I(f"s_mov_b32 s{d+2}, {nbytes}"), I(f"s_mov_b32 s{d+3}, 0x20000")]

def L(txt):
    return [I(x) for x in txt.strip().split("\n") if x.strip() and not x.strip().startswith(";")]

def kernel_text(name, code_text):
    return f""".globl {name}
.p2align 8
.type {name},@function
{name}:
{code_text}"""

def descriptor(name, nvgpr, accoff, nsgpr=102):
    return f""".p2align 6
.amdhsa_kernel {name}
  .amdhsa_next_free_vgpr {nvgpr}
  .amdhsa_next_free_sgpr {nsgpr}
  .amdhsa_accum_offset {accoff}
  .amdhsa_group_segment_fixed_size 0
  .amdhsa_kernarg_size 96
  .amdhsa_user_sgpr_count 2
  .amdhsa_user_sgpr_kernarg_segment_ptr 1
  .amdhsa_system_sgpr_workgroup_id_x 1
.end_amdhsa_kernel
"""

def finalize(code, trace=None):
    trace = trace if trace is not None else code
    insert_waits_fast(trace)
    n = hazards(trace)
    check_scc(trace)
    return emit(code), n

import os
STAMPS = bool(int(os.environ.get("STAMPS", "0")))
WS_STAMP = 100 << 20
def stamp(i, base=80):
    if not STAMPS or i is None: return []
    return L(f"""
s_memtime s[96:97]
s_memrealtime s[98:99]
s_waitcnt lgkmcnt(0)
s_mov_b32 s{base+2*i}, s96
s_mov_b32 s{base+2*i+1}, s98
""")
def stamp_out(n, srd_ws, kidx, s_wave, base=80):
    if not STAMPS: return []
    c = [I("s_waitcnt vmcnt(0)")] + stamp(n - 1, base)
    if os.environ.get("DBGOUT") and kidx == 1:
        c += L(f"""
s_load_dwordx2 s[16:17], s[0:1], {KA_DBG}
s_mov_b32 s18, 64
s_mov_b32 s19, 0x20000
s_sub_u32 s96, s2, 2
s_lshl_b32 s96, s96, 5
s_lshl_b32 s97, s{s_wave}, 8
s_add_u32 s96, s96, s97
s_min_u32 s96, s96, 0x1000
s_getreg_b32 s97, hwreg(HW_REG_XCC_ID, 0, 4)
s_sub_u32 s98, s{base+2*(n-1)}, s{base}
s_lshr_b32 s98, s98, 6
s_lshl_b32 s98, s98, 4
s_add_u32 s97, s97, s98
v_mov_b32 v1, s97
buffer_store_dword v1, off, s[16:19], s96
""")
        for i in range(1, n):
            c += L(f"""
s_sub_u32 s97, s{base+2*i+1}, s{base+2*i-1}
v_mov_b32 v1, s97
buffer_store_dword v1, off, s[16:19], s96 offset:{4*i}
""")
        return c
    c += L(f"""
s_lshl_b32 s96, s2, 2
s_add_u32 s96, s96, s{s_wave}
s_lshl_b32 s96, s96, 6
s_add_u32 s96, s96, {WS_STAMP + kidx * 262144}
v_mov_b32 v0, 0
""")
    for i in range(2 * n):
        c.append(I(f"v_mov_b32 v1, s{base+i}"))
        c.append(I(f"buffer_store_dword v1, v0, s[{srd_ws}:{srd_ws+3}], s96 offen offset:{4*i}"))
    return c

ABL = os.environ.get("ABL", "").split(",")

STF = os.environ.get("STF", "")
STF = (" " + STF) if STF else ""

STAMPSET = os.environ.get("STAMPSET", "")
KVF = (" " + os.environ["KVF"]) if os.environ.get("KVF") else ""
```

```python
import sys
KN = "recurrent_scan__mha_block_cached__glu_gated_swiglu__prompt"

HEAD = """; @launch grid=(GRID,1,1) block=(BLOCK,1,1) lds=LDSB
.amdgcn_target "amdgcn-amd-amdhsa--gfx950"
.text
.globl KN_kernel
.p2align 8
.type KN_kernel,@function
KN_kernel:
"""
TAIL = """
s_endpgm
.section .rodata,"a"
.p2align 6
.amdhsa_kernel KN_kernel
  .amdhsa_next_free_vgpr NFV
  .amdhsa_next_free_sgpr 102
  .amdhsa_accum_offset ACCOFF
  .amdhsa_group_segment_fixed_size 0
  .amdhsa_kernarg_size 96
  .amdhsa_user_sgpr_count 2
  .amdhsa_user_sgpr_kernarg_segment_ptr 1
  .amdhsa_system_sgpr_workgroup_id_x 1
.end_amdhsa_kernel
"""

def gen(body, iters, block=256, grid=256, lds=131072, nfv=512, accoff=256, pre=""):
    o = HEAD.replace("GRID", str(grid)).replace("BLOCK", str(block)).replace("LDSB", str(lds)).replace("KN", KN)
    o += f"""
    s_cmp_ge_u32 s2, {grid}
    s_cbranch_scc1 L_end
    s_load_dwordx2 s[4:5], s[0:1], 8      ; K cache
    s_load_dwordx2 s[6:7], s[0:1], 80     ; dbg
    s_waitcnt lgkmcnt(0)
    s_mov_b32 s8, s4
    s_mov_b32 s9, s5
    s_mov_b32 s10, 0x1000000
    s_mov_b32 s11, 0x20000
    s_mov_b32 s12, s6
    s_mov_b32 s13, s7
    s_mov_b32 s14, 256
    s_mov_b32 s15, 0x20000
    v_lshlrev_b32 v1, 4, v0
    s_lshl_b32 s3, s2, 16
"""
    for i in range(16):
        o += f"    buffer_load_dwordx4 v[{16+4*i}:{19+4*i}], v1, s[8:11], s3 offen offset:0\n"
        o += f"    s_add_u32 s3, s3, 4096\n"
    o += "    s_waitcnt vmcnt(0)\n"
    o += "    v_lshlrev_b32 v2, 4, v0\n"
    for i in range(16):
        o += f"    ds_write_b128 v2, v[{16+4*i}:{19+4*i}] offset:{i*4096}\n"
    o += "    s_waitcnt lgkmcnt(0)\n    s_barrier\n"
    o += "    v_and_b32 v3, 63, v0\n    v_lshlrev_b32 v3, 4, v3\n"
    o += "    v_and_b32 v4, 63, v0\n    v_lshlrev_b32 v4, 3, v4\n"
    for i in range(accoff if nfv > accoff else 0):
        if i < nfv - accoff:
            o += f"    v_accvgpr_write_b32 a{i}, 0\n"
    for i in range(82, min(accoff, 256)):
        o += f"    v_mov_b32 v{i}, 0.5\n"
    o += pre
    o += f"    s_mov_b32 s20, {iters}\n    s_mov_b32 m0, 0\n    s_lshl_b32 s3, s2, 16\n"
    o += "    s_barrier\n    s_memtime s[40:41]\n    s_memrealtime s[44:45]\n    s_waitcnt lgkmcnt(0)\n"
    o += "    .p2align 6\nL_loop:\n" + body
    o += """
    s_sub_u32 s20, s20, 1
    s_cmp_lg_u32 s20, 0
    s_cbranch_scc1 L_loop
    s_nop 15
    s_nop 15
    s_waitcnt vmcnt(0) lgkmcnt(0)
    s_memtime s[42:43]
    s_memrealtime s[46:47]
    s_waitcnt lgkmcnt(0)
    s_sub_u32 s42, s42, s40
    s_sub_u32 s46, s46, s44
    s_cmp_ge_u32 s2, 16
    s_cbranch_scc1 L_end
    v_mov_b32 v80, s42
    v_mov_b32 v81, s46
    s_lshl_b32 s3, s2, 3
    v_mov_b32 v5, s3
    v_cmp_eq_u32 vcc, 0, v0
    s_and_saveexec_b64 s[30:31], vcc
    s_cbranch_execz L_end
    buffer_store_dwordx2 v[80:81], v5, s[12:15], 0 offen
    s_waitcnt vmcnt(0)
L_end:
"""
    o += TAIL.replace("KN", KN).replace("NFV", str(nfv)).replace("ACCOFF", str(accoff))
    return o

def mfma32(i, nacc=8):
    a = (i % nacc) * 16
    sa = 16 + 4 * (i % 8); sb = 48 + 4 * ((i // 2) % 8)
    return f"    v_mfma_f32_32x32x16_bf16 a[{a}:{a+15}], v[{sa}:{sa+3}], v[{sb}:{sb+3}], a[{a}:{a+15}]\n"
def mfma16(i, nacc=32):
    a = (i % nacc) * 4
    sa = 16 + 4 * (i % 8); sb = 48 + 4 * ((i // 2) % 8)
    return f"    v_mfma_f32_16x16x32_bf16 a[{a}:{a+3}], v[{sa}:{sa+3}], v[{sb}:{sb+3}], a[{a}:{a+3}]\n"

if __name__ == "__main__":
    name = sys.argv[1]
    N = 64
    if name == "m32":
        body = "".join(mfma32(i) for i in range(N)); s = gen(body, 48)
    elif name == "m16":
        body = "".join(mfma16(i) for i in range(2 * N)); s = gen(body, 48)
    elif name == "m32long":
        body = "".join(mfma32(i) for i in range(N)); s = gen(body, 480)
    elif name == "m16long":
        body = "".join(mfma16(i) for i in range(2 * N)); s = gen(body, 480)
    elif name.startswith("f"):
        codes = name[1:]
        body = ""
        for i in range(N):
            body += mfma32(i)
            for c in codes:
                r = 100 + (i % 32)
                if c == "e": body += f"    v_exp_f32 v{r}, v{r+32}\n"
                elif c == "a": body += f"    v_add_f32 v{170+(i%4)}, v{170+(i%4)}, v{100+((i+16)%32)}\n"
                elif c == "m": body += f"    v_mul_f32 v{180+(i%8)}, v{190+(i%8)}, v{100+((i+16)%32)}\n"
                elif c == "c":
                    if i % 2 == 0: body += f"    v_cvt_pk_bf16_f32 v{200+(i%16)}, v{100+((i+8)%32)}, v{100+((i+9)%32)}\n"
                elif c == "r":
                    if i % 2 == 0: body += f"    ds_read_b128 a[{128+4*((i//2)%16)}:{131+4*((i//2)%16)}], v3 offset:{1024*((i//2)%32)}\n"
                elif c == "R":
                    body += f"    ds_read_b128 a[{128+4*(i%16)}:{131+4*(i%16)}], v3 offset:{1024*(i%32)}\n"
                elif c == "t":
                    body += f"    ds_read_b64_tr_b16 a[{192+2*(i%32)}:{193+2*(i%32)}], v4 offset:{512*(i%64)}\n"
                elif c == "x":
                    if (i // 16) % 2 == 0:
                        if i % 2 == 0: body += f"    ds_read_b128 a[{128+4*((i//2)%16)}:{131+4*((i//2)%16)}], v3 offset:{1024*((i//2)%32)}\n"
                    else:
                        body += f"    ds_read_b64_tr_b16 a[{192+2*(i%32)}:{193+2*(i%32)}], v4 offset:{512*(i%64)}\n"
                elif c == "d":
                    if i % 8 == 3:
                        body += f"    s_mov_b32 m0, {65536 + 4096*((i//8)%8)}\n"
                    if i % 8 == 4:
                        body += f"    buffer_load_dwordx4 v1, s[8:11], s3 offen lds\n"
                    if i % 8 == 5:
                        body += f"    s_add_u32 s3, s3, 4096\n    s_and_b32 s3, s3, 0xffffff\n"
                elif c == "w":
                    if i % 16 == 15: body += "    s_waitcnt lgkmcnt(4)\n"
                elif c == "b":
                    if i == N - 1: body += "    s_waitcnt vmcnt(8)\n    s_barrier\n"
        s = gen(body, 48)
    open(f"mb_{name}.s", "w").write(s)
```

```python
from mbgen import gen
def m16(i):
    a = (i % 32) * 4; sa = 16 + 4 * ((i // 4) % 8); sb = 48 + 4 * (i % 8)
    return f"    v_mfma_f32_16x16x32_bf16 a[{a}:{a+3}], v[{sa}:{sa+3}], v[{sb}:{sb+3}], a[{a}:{a+3}]\n"
F = {
 "e": lambda i: f"    v_exp_f32 v{100+(i%32)}, v{132+(i%32)}\n",
 "a": lambda i: f"    v_add_f32 v{170+(i%4)}, v{170+(i%4)}, v{100+((i+16)%32)}\n",
 "b": lambda i: f"    v_add_f32 v{174+(i%4)}, v{174+(i%4)}, v{100+((i+17)%32)}\n",
 "D": lambda i: f"    v_dot2_f32_bf16 v{170+(i%4)}, v{200+(i%16)}, v180, v{170+(i%4)}\n",
 "E": lambda i: f"    v_dot2c_f32_bf16 v{170+(i%4)}, v{200+(i%16)}, v180\n",
 "p": lambda i: f"    v_pk_add_f32 v[{170+2*(i%4)}:{171+2*(i%4)}], v[{170+2*(i%4)}:{171+2*(i%4)}], v[{100+2*((i+8)%16)}:{101+2*((i+8)%16)}]\n",
 "c": lambda i: f"    v_cvt_pk_bf16_f32 v{200+(i%16)}, v{100+((i+8)%32)}, v{100+((i+9)%32)}\n",
 "r": lambda i: f"    ds_read_b128 a[{128+4*(i%16)}:{131+4*(i%16)}], v3 offset:{1024*(i%32)}\n",
 "t": lambda i: f"    ds_read_b64_tr_b16 a[{192+2*(i%32)}:{193+2*(i%32)}], v4 offset:{512*(i%64)}\n",
 "s": lambda i: f"    s_add_u32 s30, s30, 1\n",
 "n": lambda i: f"    s_nop 0\n",
 "w": lambda i: f"    s_waitcnt lgkmcnt(15)\n",
 "m": lambda i: f"    v_max3_f32 v{184+(i%4)}, v{184+(i%4)}, v{100+((i+16)%32)}, v{100+((i+17)%32)}\n",
 "f": lambda i: f"    v_fma_f32 v{184+(i%8)}, v{100+((i+16)%32)}, v181, v182\n",
}
def build(pat):
    body = ""
    for i in range(128):
        body += m16(i)
        for c in pat[i % len(pat)]:
            body += F[c](i)
    return gen(body, 48)
out = {
 "T1": ["ab"], "T2": ["D"], "T3": ["Da"], "T4": ["E"], "T5": ["Ea"], "T6": ["p"], "T7": ["pa"],
 "T8": ["abs"], "T9": ["abn"], "T10": ["abw"], "T11": ["sab"], "T12": ["tt"], "T13": ["rt"], "T14": ["cc"], "T15": ["mf"],
 "T16": ["e", "Dc"], "T17": ["e", "tD"], "T18": ["e","ss"], "T19": ["se"], "T20": ["es"],
}
for k, b in out.items():
    open(f"mb_{k}.s", "w").write(build(b))
print(" ".join(f"mb_{k}.s" for k in out))
print(", ".join(f'"mb/mb_{k}.s"' for k in out))
```

```python
from mbgen import gen
from mbgen5 import F
F["p"] = lambda i: f"    v_permlane16_swap_b32 v{200+(i%8)}, v{208+(i%8)}\n"
def va(i): r = 16 + 4 * (i % 8); return f"v[{r}:{r+3}]"
def vb(i): r = 48 + 4 * (i % 8); return f"v[{r}:{r+3}]"
def m16(acc, A, B): return f"    v_mfma_f32_16x16x32_bf16 a[{acc}:{acc+3}], {A}, {B}, a[{acc}:{acc+3}]\n"
def m32(acc, A, B): return f"    v_mfma_f32_32x32x16_bf16 a[{acc}:{acc+15}], {A}, {B}, a[{acc}:{acc+15}]\n"
def fill(s, i): return "".join(F[c](i + k) for k, c in enumerate(s))
A = ""; fa = (["e", "e", "cc", "e", "e", "tt", "ra", "a"] * 8)
i = 0; g = 0
for q in range(8):
    for s in range(4): A += m16(q * 4, va(i), vb(i * 3)) + fill(fa[g], g); i += 1; g += 1
    for t in range(4): A += m16(32 + (q * 4 + t) * 4 % 96, va(q), vb(i)) + fill(fa[g], g); i += 1; g += 1
    if q in (2, 4, 6): A += "    v_mfma_f32_16x16x32_bf16 v[228:231], v[232:235], v[200:203], 0\n"
B = ""; i = 0
for q in range(8):
    B += m32(0, va(i), vb(i * 3)) + fill("reaacp", q * 8); i += 1
    B += m32(16, va(i - 1), vb(i * 3)) + fill("eeac", q * 8 + 3); i += 1
    for t, f in enumerate(("e", "tt", "aa", "a" if q < 3 else "")): B += m16(32 + (q * 4 + t) * 4 % 96, va(q), vb(i)) + fill(f, q * 8 + 5 + t); i += 1
PRE = "    v_and_b32 v232, 3, v0\n    v_min_u32 v232, 1, v232\n    v_add_u32 v232, -1, v232\n    v_and_b32 v232, 0x3f803f80, v232\n    v_mov_b32 v233, v232\n    v_mov_b32 v234, v232\n    v_mov_b32 v235, v232\n"
open("mb_HA.s", "w").write(gen(A, 64, pre=PRE)); open("mb_HB.s", "w").write(gen(B, 64, pre=PRE))
```
